```python
import torch

def _softmax(x, axis=-1):
    return torch.softmax(x, dim=axis)
def _gelu(x):
    return torch.nn.functional.gelu(x, approximate="tanh")
def _silu(x):
    return torch.nn.functional.silu(x)
def _sigmoid(x):
    return torch.sigmoid(x)
def _layernorm(x, axis=-1, eps=1e-5):
    m = x.mean(dim=axis, keepdim=True)
    v = x.var(dim=axis, keepdim=True, unbiased=False)
    return (x - m) / torch.sqrt(v + eps)
def _scatter_add(tgt, idx, src, axis=0):
    return tgt.clone().index_add_(axis, idx, src)
def _segment_sum(src, seg, n):
    out = torch.zeros((n,) + src.shape[1:], dtype=src.dtype)
    return out.index_add_(0, seg, src)
def _pad(x, pw):
    flat = tuple(v for pair in reversed(pw) for v in pair)
    return torch.nn.functional.pad(x, flat)

kernel_name = 'standalone__gqa_block_cached__decode'

def setup_inputs():

    _w = (lambda a: (lambda t: t.to(torch.bfloat16) if t.is_floating_point() else t)(torch.as_tensor(a)))
    B, Sq, D = 1, 1, 640
    Hq, Hkv, Sk, Dh = 32, 32, 32768, 128
    assert Hq % Hkv == 0, (Hq, Hkv)
    return {
        "x": _w((lambda *s: torch.randn(*s, dtype=torch.bfloat16) * 0.8)(B, Sq, D)),
        "k_cache": _w((lambda *s: torch.randn(*s, dtype=torch.bfloat16) * 0.8)(B, Hkv, Sk, Dh)),
        "v_cache": _w((lambda *s: torch.randn(*s, dtype=torch.bfloat16) * 0.05)(B, Hkv, Sk, Dh)),
        "wq": _w((lambda *s: torch.randn(*s, dtype=torch.bfloat16) * 0.8)(D, Hq * Dh) * (D ** -0.5)),
        "wo": _w((lambda *s: torch.randn(*s, dtype=torch.bfloat16) * 0.05)(Hq * Dh, D) * ((Hq * Dh) ** -0.5)),
    }

def reference(x, k_cache, v_cache, wq, wo):
    B, Sq, D = x.shape
    Hq, Dh = 32, 128
    Hkv = k_cache.shape[1]
    rep = Hq // Hkv
    q = (lambda x, *d: x.permute(*d))((x @ wq).reshape(B, Sq, Hq, Dh), 0, 2, 1, 3)
    k = (lambda x, n, axis: torch.repeat_interleave(x, n, dim=axis))(k_cache, rep, axis=1)
    v = (lambda x, n, axis: torch.repeat_interleave(x, n, dim=axis))(v_cache, rep, axis=1)
    scores = torch.einsum("bhqd,bhkd->bhqk", q, k) * (Dh ** -0.5)
    p = _softmax(scores, axis=-1)
    o = torch.einsum("bhqk,bhkd->bhqd", p, v)
    return (lambda x, *d: x.permute(*d))(o, 0, 2, 1, 3).reshape(B, Sq, Hq * Dh) @ wo
```

```python
import sys
name = "standalone__gqa_block_cached__decode_kernel"
def gen(NW=8, C=4, R=2, FLAGS="nt", vg=256, sS=1<<20, sW=4096, sJ=32768, bar=False, lds=0, seq=False, NWG=256, prio=False):
    GB = C * 1024
    total_per_wave = (256 << 20) // (NWG * NW)
    NIT = total_per_wave // GB
    D = 2 * C * R
    o = []; a = o.append
    a(f"; @launch grid=({NWG},1,1) block=({NW*64},1,1) lds={lds}")
    a('.amdgcn_target "amdgcn-amd-amdhsa--gfx950"')
    a(".text"); a(f".globl {name}"); a(".p2align 8"); a(f".type {name},@function"); a(f"{name}:")
    a(f"  s_cmp_ge_u32 s2, {NWG}")
    a("  s_cbranch_scc1 L_end")
    a("  s_load_dwordx4 s[4:7], s[0:1], 8")
    a("  s_load_dwordx4 s[20:23], s[0:1], 48")
    a("  s_memrealtime s[24:25]")
    a("  v_and_b32 v1, 63, v0")
    a("  v_lshrrev_b32 v2, 6, v0")
    a("  v_lshlrev_b32 v3, 4, v1")
    a("  s_nop 0")
    a("  v_readfirstlane_b32 s17, v2")
    if isinstance(sS, tuple):
        a("  s_lshr_b32 s3, s2, 3"); a("  s_and_b32 s18, s2, 7")
        a(f"  s_mul_i32 s3, s3, {sS[0]}"); a(f"  s_mul_i32 s18, s18, {sS[1]}"); a("  s_add_u32 s18, s18, s3")
    else:
        a(f"  s_mul_i32 s18, s2, {sS}")
    a(f"  s_mul_i32 s19, s17, {sW}")
    a("  s_add_u32 s18, s18, s19")
    if prio:
        a("  s_cmp_ge_u32 s17, 4"); a("  s_cbranch_scc0 L_np"); a("  s_setprio 1"); a("L_np:")
    a("  s_waitcnt lgkmcnt(0)")
    a("  s_mov_b32 s8, s4"); a("  s_mov_b32 s9, s5"); a(f"  s_mov_b32 s10, {256<<20}"); a("  s_mov_b32 s11, 0x20000")
    a("  s_mov_b32 s12, s6"); a("  s_mov_b32 s13, s7"); a(f"  s_mov_b32 s14, {256<<20}"); a("  s_mov_b32 s15, 0x20000")
    a("  v_mov_b32 v6, 0"); a("  v_mov_b32 v7, 0")
    a("  v_mov_b32 v14, 0"); a("  v_mov_b32 v15, 0")
    base = 16
    def issue(rp, sreg, i):
        if seq:
            w = 0; u = i
        else:
            w = i // C; u = i % C
        srd = "s[8:11]" if w == 0 else "s[12:15]"
        b = base + 4*(rp*2*C + i)
        vo = "v3" if u < 4 else f"v{8+u//4}" if u < 16 else None
        assert vo
        return [f"  buffer_load_dwordx4 v[{b}:{b+3}], {vo}, {srd}, {sreg} offen offset:{(u%4)*1024} {FLAGS}"]
    for k in range(1, 4):
        a(f"  v_add_u32 v{8+k}, {k*4096}, v3")
    a("  s_mov_b32 s44, s18")
    for rp in range(R):
        for i in range(2*C):
            for l in issue(rp, "s44", i): a(l)
        a(f"  s_add_u32 s44, s44, {sJ}")
    a("  s_mov_b32 s50, 0")
    a("L_loop:")
    for it in range(R):
        rp = it
        a(f"  s_cmp_ge_u32 s50, {NIT-R}")
        a("  s_cbranch_scc1 L_drain")
        if seq:
            a(f"  s_cmp_eq_u32 s50, {NIT//2-R}")
            a(f"  s_cbranch_scc0 L_nsw{it}")
            a("  s_mov_b32 s8, s12"); a("  s_mov_b32 s9, s13"); a("  s_mov_b32 s44, s18")
            a(f"L_nsw{it}:")
        if bar: a("  s_barrier")
        for i in range(2*C):
            a(f"  s_waitcnt vmcnt({D-1})")
            b = base + 4*(rp*2*C + i)
            a(f"  v_xor_b32 v6, v6, v{b}"); a(f"  v_xor_b32 v7, v7, v{b+1}");a(f"  v_xor_b32 v6, v6, v{b+2}"); a(f"  v_xor_b32 v7, v7, v{b+3}")
            for l in issue(rp, "s44", i): a(l)
        a(f"  s_add_u32 s44, s44, {sJ}")
        a("  s_memrealtime s[26:27]")
        a("  s_waitcnt lgkmcnt(0)")
        a("  s_and_b32 s27, s50, 63")
        a("  s_mov_b32 m0, s27")
        a("  s_cmp_lt_u32 s50, 64")
        a(f"  s_cbranch_scc0 L_ts{it}")
        a("  v_writelane_b32 v14, s26, m0")
        a(f"  s_branch L_ts2{it}")
        a(f"L_ts{it}:")
        a("  v_writelane_b32 v15, s26, m0")
        a(f"L_ts2{it}:")
        a("  s_add_u32 s50, s50, 1")
    a("  s_branch L_loop")
    a("L_drain:")
    a("  s_waitcnt vmcnt(0)")
    a("  s_memrealtime s[26:27]")
    a("  s_getreg_b32 s28, hwreg(HW_REG_XCC_ID)")
    a("  s_getreg_b32 s29, hwreg(HW_REG_HW_ID)")
    a("  s_waitcnt lgkmcnt(0)")
    a("  v_lshrrev_b32 v2, 6, v0")
    a(f"  s_mul_i32 s3, s2, {NW}")
    a("  v_add_u32 v2, s3, v2")
    a("  v_lshlrev_b32 v16, 9, v2")
    a("  v_lshl_add_u32 v16, v1, 2, v16")
    a("  v_add_u32 v16, 0x120000, v16")
    a("  global_store_dword v16, v14, s[22:23]")
    a("  global_store_dword v16, v15, s[22:23] offset:256")
    a("  v_lshlrev_b32 v2, 5, v2")
    a("  v_add_u32 v2, 0x100000, v2")
    a("  v_mov_b32 v8, s24"); a("  v_mov_b32 v9, s25"); a("  v_mov_b32 v10, s26"); a("  v_mov_b32 v11, s27")
    a("  v_mov_b32 v12, s28"); a("  v_mov_b32 v13, s29"); a("  v_mov_b32 v14, s50"); a("  v_mov_b32 v15, v7")
    a("  v_cmp_eq_u32 vcc, 0, v1")
    a("  s_and_saveexec_b64 s[18:19], vcc")
    a("  global_store_dwordx4 v2, v[8:11], s[22:23]")
    a("  global_store_dwordx4 v2, v[12:15], s[22:23] offset:16")
    a("L_end:")
    a("  s_endpgm")
    a('.section .rodata,"a"'); a(".p2align 6")
    a(f".amdhsa_kernel {name}")
    a(f"  .amdhsa_next_free_vgpr {vg}"); a("  .amdhsa_next_free_sgpr 64"); a(f"  .amdhsa_accum_offset {vg}")
    a("  .amdhsa_group_segment_fixed_size 0"); a("  .amdhsa_kernarg_size 64"); a("  .amdhsa_user_sgpr_count 2")
    a("  .amdhsa_user_sgpr_kernarg_segment_ptr 1"); a("  .amdhsa_system_sgpr_workgroup_id_x 1")
    a(".end_amdhsa_kernel")
    return "\n".join(o) + "\n"

if __name__ == "__main__":
    from build import build
    cfgs = []
    def add(tag, **kw):
        s = gen(**kw); fn = f"pat_{tag}.s"; open(fn, "w").write(s); build(fn); cfgs.append((tag, kw))
    M = 1 << 20; K = 1024
    add("a", NW=8, C=4, R=2, sS=M, sW=4*K, sJ=32*K)
    add("b", NW=8, C=4, R=2, sS=M, sW=4*K, sJ=32*K, bar=True)
    add("c", NW=8, C=4, R=2, sS=M, sW=128*K, sJ=4*K)
    add("d", NW=8, C=4, R=2, sS=(8*M, 32*K), sW=4*K, sJ=256*K, bar=True)
    add("e", NW=8, C=4, R=2, sS=M, sW=8*K, sJ=64*K, seq=True)
    add("f", NW=8, C=4, R=2, sS=M, sW=8*K, sJ=64*K, seq=True, bar=True)
    add("g", NW=8, C=2, R=4, sS=M, sW=2*K, sJ=16*K, bar=True)
    add("h", NW=8, C=8, R=1, sS=M, sW=8*K, sJ=64*K, bar=True)
    add("i", NW=8, C=4, R=2, sS=32*K, sW=4*K, sJ=8*M, bar=True)
    add("j", NW=8, C=4, R=2, sS=(8*M, 128*K), sW=4*K, sJ=32*K, bar=True)
    with open("run_pat.sh", "w") as f:
        for tag, kw in cfgs:
            if tag == "j": continue
            f.write(f"echo '{tag} {kw}'\n")
            f.write(f"./host pat_{tag}.co 21 -wsoff 1048576 -dumpws 2097152 -- {name} 256 {kw['NW']*64} {kw.get('lds',0)}\n")
            f.write(f"python ana_ts.py {kw['NW']} 256 {kw['C']} | head -2\n")
    print(" ".join(f'"exp/pat_{t}.co",' for t,_ in cfgs))
```

```python
from gen_pat import gen, name
from build import build
cfgs = []
def add(tag, **kw):
    s = gen(**kw); fn = f"p3_{tag}.s"; open(fn, "w").write(s); build(fn); cfgs.append((tag, kw))
M = 1 << 20; K = 1024
add("own", NW=4, C=4, R=2, sS=M, sW=4*K, sJ=16*K, bar=True)
add("inter", NW=4, C=4, R=2, sS=(8*M, 16*K), sW=4*K, sJ=128*K, bar=True)
add("seq", NW=4, C=4, R=2, sS=M, sW=8*K, sJ=32*K, bar=True, seq=True)
add("full", NW=4, C=4, R=2, sS=16*K, sW=4*K, sJ=4*M, bar=True)
add("seqfull", NW=4, C=4, R=2, sS=32*K, sW=8*K, sJ=8*M, bar=True, seq=True)
print(" ".join(f'"exp/p3_{t}.co",' for t,_ in cfgs))
```
